```python
import torch

def _softmax(x, axis=-1):
    return torch.softmax(x, dim=axis)
def _gelu(x):
    return torch.nn.functional.gelu(x, approximate="tanh")
def _silu(x):
    return torch.nn.functional.silu(x)
def _sigmoid(x):
    return torch.sigmoid(x)
def _layernorm(x, axis=-1, eps=1e-5):
    m = x.mean(dim=axis, keepdim=True)
    v = x.var(dim=axis, keepdim=True, unbiased=False)
    return (x - m) / torch.sqrt(v + eps)
def _scatter_add(tgt, idx, src, axis=0):
    return tgt.clone().index_add_(axis, idx, src)
def _segment_sum(src, seg, n):
    out = torch.zeros((n,) + src.shape[1:], dtype=src.dtype)
    return out.index_add_(0, seg, src)
def _pad(x, pw):
    flat = tuple(v for pair in reversed(pw) for v in pair)
    return torch.nn.functional.pad(x, flat)

kernel_name = 'gated_mix__compressed_kv_cla__dense_activation_relu__prompt'

def setup_inputs():

    _w = (lambda a: (lambda t: t.to(torch.bfloat16) if t.is_floating_point() else t)(torch.as_tensor(a)))
    def _A_setup():
        B, H, Sq, Sk, D, M = 1, 32, 2048, 2048, 128, 576
        Dc = 4 * D
        return {
            "x": _w((lambda *s: torch.randn(*s, dtype=torch.bfloat16) * 0.05)(B, Sq, M)),
            "c_kv": _w((lambda *s: torch.randn(*s, dtype=torch.bfloat16) * 0.8)(B, Sk, Dc)),
            "w_q": _w((lambda *s: torch.randn(*s, dtype=torch.bfloat16) * 6.4)(M, H, D) * (M ** -0.5)),
            "w_uk": _w((lambda *s: torch.randn(*s, dtype=torch.bfloat16) * 6.4)(Dc, H, D) * (Dc ** -0.5)),
            "w_uv": _w((lambda *s: torch.randn(*s, dtype=torch.bfloat16) * 0.8)(Dc, H, D) * (Dc ** -0.5)),
            "w_o": _w((lambda *s: torch.randn(*s, dtype=torch.bfloat16) * 0.8)(H, D, M) * ((H * D) ** -0.5)),
        }
    _A_in = _A_setup()

    def _B_setup():
        B, S, D, Dff = 1, 2048, 576, 4608
        return {
            "x": _w((lambda *s: torch.randn(*s, dtype=torch.bfloat16) * 0.05)(B, S, D)),
            "w1": _w((lambda *s: torch.randn(*s, dtype=torch.bfloat16) * 0.05)(D, Dff)),
            "w2": _w((lambda *s: torch.randn(*s, dtype=torch.bfloat16) * 0.05)(Dff, D)),
        }
    _B_in = _B_setup()

    return {
        "A_x": _A_in["x"],
        "A_c_kv": _A_in["c_kv"],
        "A_w_q": _A_in["w_q"],
        "A_w_uk": _A_in["w_uk"],
        "A_w_uv": _A_in["w_uv"],
        "A_w_o": _A_in["w_o"],
        "B_x": _B_in["x"],
        "B_w1": _B_in["w1"],
        "B_w2": _B_in["w2"],
        "gate_w": _w((lambda *s: torch.randn(*s, dtype=torch.bfloat16) * 0.05)(576) * 16.0),
    }

def reference(A_x, A_c_kv, A_w_q, A_w_uk, A_w_uv, A_w_o, B_x, B_w1, B_w2, gate_w):
    def _A_ref(x, c_kv, w_q, w_uk, w_uv, w_o):
        B, Sq, M = x.shape[0], x.shape[1], x.shape[2]
        Sk = c_kv.shape[1]
        H, D = w_q.shape[1], w_q.shape[2]
        q = torch.einsum("bqm,mhd->bhqd", x, w_q)
        k = torch.einsum("bkc,chd->bhkd", c_kv, w_uk)
        v = torch.einsum("bkc,chd->bhkd", c_kv, w_uv)
        scores = torch.einsum("bhqd,bhkd->bhqk", q, k) * (D ** -0.5)
        off = Sk - Sq
        qi = torch.arange(Sq)[:, None]
        kj = torch.arange(Sk)[None, :]
        cmask = kj <= (qi + off)
        scores = torch.where(cmask[None, None], scores, -1e9)
        p = _softmax(scores, axis=-1)
        ctx = torch.einsum("bhqk,bhkd->bhqd", p, v)
        return torch.einsum("bhqd,hdm->bqm", ctx, w_o)

    def _B_ref(x, w1, w2):
        h = torch.einsum("bsd,df->bsf", x, w1)
        zero = torch.zeros_like(h)
        h = torch.maximum(h, zero)
        return torch.einsum("bsf,fd->bsd", h, w2)

    x = A_x
    g = _sigmoid((x * gate_w).sum(-1, keepdims=True))
    a = _A_ref(x, A_c_kv, A_w_q, A_w_uk, A_w_uv, A_w_o)
    b = _B_ref(x, B_w1, B_w2)
    return g * a + (1 - g) * b
```

```python
class Asm:
    def __init__(self):
        self.lines = []
    def __call__(self, s):
        self.lines.append("    " + s)
    def label(self, s):
        self.lines.append(s + ":")
    def comment(self, s):
        self.lines.append("    ; " + s)
    def raw(self, s):
        self.lines.append(s)
    def text(self):
        return "\n".join(self.lines) + "\n"

def vr(b, n=1):
    return f"v{b}" if n == 1 else f"v[{b}:{b+n-1}]"
def sr(b, n=1):
    return f"s{b}" if n == 1 else f"s[{b}:{b+n-1}]"
def ar(b, n=1):
    return f"a{b}" if n == 1 else f"a[{b}:{b+n-1}]"

def kernel_header(a, name):
    a.raw(f".globl {name}")
    a.raw(".p2align 8")
    a.raw(f".type {name},@function")
    a.label(name)

def kernel_desc(a, name, vgpr, sgpr=102, accum=None):
    if accum is None:
        accum = (vgpr + 3) // 4 * 4
    a.raw(".section .rodata,\"a\"")
    a.raw(".p2align 6")
    a.raw(f".amdhsa_kernel {name}")
    a.raw(f"  .amdhsa_next_free_vgpr {vgpr}")
    a.raw(f"  .amdhsa_next_free_sgpr {sgpr}")
    a.raw(f"  .amdhsa_accum_offset {accum}")
    a.raw("  .amdhsa_group_segment_fixed_size 0")
    a.raw("  .amdhsa_kernarg_size 104")
    a.raw("  .amdhsa_user_sgpr_count 2")
    a.raw("  .amdhsa_user_sgpr_kernarg_segment_ptr 1")
    a.raw("  .amdhsa_system_sgpr_workgroup_id_x 1")
    a.raw(".end_amdhsa_kernel")
    a.raw(".text")

def make_srd(a, d, ptr_lo, nbytes):
    a(f"s_mov_b32 s{d}, s{ptr_lo}")
    a(f"s_mov_b32 s{d+1}, s{ptr_lo+1}")
    a(f"s_mov_b32 s{d+2}, {nbytes}")
    a(f"s_mov_b32 s{d+3}, 0x00020000")
```

```python
from asmlib import *

WS_Q = 0
WS_K = 16 << 20
WS_VT = 32 << 20
WS_H = 48 << 20
WS_CTX = 72 << 20
WS_PART = 96 << 20

LDS_STAGE = 32768

def gen_k1(a, name="k1_kernel"):
    kernel_header(a, name)
    a("s_cmp_ge_u32 s2, 2112")
    a(f"s_cbranch_scc1 {name}_end")
    a("s_load_dwordx2 s[26:27], s[0:1], 0")
    a("s_load_dwordx2 s[28:29], s[0:1], 8")
    a("s_load_dwordx2 s[32:33], s[0:1], 96")
    a("s_lshr_b32 s34, s2, 4")
    a("s_and_b32 s35, s2, 15")
    a("s_lshr_b32 s36, s34, 5")
    a("s_cmp_ge_u32 s34, 96")
    a("s_cselect_b32 s36, 3, s36")
    a("s_lshl_b32 s37, s36, 3")
    a("s_add_u32 s37, s37, 16")
    a("s_cmp_eq_u32 s36, 3")
    a("s_cselect_b32 s37, 56, s37")
    a("s_load_dwordx2 s[30:31], s[0:1], s37")
    a("s_lshl_b32 s38, s36, 5")
    a("s_sub_u32 s38, s34, s38")
    a("s_cmp_eq_u32 s36, 0")
    a("s_cselect_b32 s39, 1, 0")
    a("s_cmp_eq_u32 s36, 3")
    a("s_cselect_b32 s39, 1, s39")
    a("s_waitcnt lgkmcnt(0)")
    a("s_cmp_eq_u32 s39, 1")
    a("s_cselect_b32 s4, s26, s28")
    a("s_cselect_b32 s5, s27, s29")
    a("s_mov_b32 s41, 2097152")
    a("s_cselect_b32 s6, 2359296, s41")
    a("s_mov_b32 s7, 0x00020000")
    a("s_mov_b32 s41, 1024")
    a("s_cselect_b32 s19, 1152, s41")
    a("s_cselect_b32 s18, 9, 8")
    a("s_mov_b32 s8, s30")
    a("s_mov_b32 s9, s31")
    a("s_cmp_eq_u32 s36, 3")
    a("s_mov_b32 s41, 8192")
    a("s_cselect_b32 s20, 9216, s41")
    a("s_mul_i32 s10, s18, 64")
    a("s_mul_i32 s10, s10, s20")
    a("s_mov_b32 s11, 0x00020000")
    a("s_lshl_b32 s23, s20, 6")
    a("s_mov_b32 s40, 0")
    a(f"s_cmp_eq_u32 s36, 1")
    a(f"s_cselect_b32 s40, {WS_K}, s40")
    a(f"s_cmp_eq_u32 s36, 2")
    a(f"s_cselect_b32 s40, {WS_VT}, s40")
    a(f"s_cmp_eq_u32 s36, 3")
    a(f"s_cselect_b32 s40, {WS_H}, s40")
    a("s_add_u32 s12, s32, s40")
    a("s_addc_u32 s13, s33, 0")
    a("s_cmp_eq_u32 s36, 3")
    a("s_mov_b32 s41, 16777216")
    a("s_cselect_b32 s14, 18874368, s41")
    a("s_mov_b32 s15, 0x00020000")
    a("s_mov_b32 s21, s20")
    a("s_cselect_b32 s24, 0, 0xff800000")
    a("s_mul_i32 s16, s35, 128")
    a("s_mul_i32 s16, s16, s19")
    a("s_lshl_b32 s17, s38, 8")
    a("v_and_b32 v1, 63, v0")
    a("v_lshrrev_b32 v2, 6, v0")
    a("s_nop 0")
    a("v_readfirstlane_b32 s22, v2")
    a("v_lshrrev_b32 v3, 3, v1")
    a("v_lshl_add_u32 v3, v2, 5, v3")
    a("v_and_b32 v4, 7, v1")
    for jj in range(4):
        a(f"v_add_u32 v5, {jj*8}, v3")
        a("v_lshrrev_b32 v6, 1, v5")
        a("v_and_b32 v6, 7, v6")
        a("v_xor_b32 v6, v4, v6")
        a("v_mul_lo_u32 v5, v5, s19")
        a(f"v_lshl_add_u32 v{10+jj}, v6, 4, v5")
    a("v_lshrrev_b32 v3, 4, v1")
    a("v_and_b32 v4, 15, v1")
    a("v_lshrrev_b32 v5, 2, v4")
    a("v_xor_b32 v5, v5, v3")
    a("v_and_b32 v4, 3, v4")
    a("v_lshl_add_u32 v4, v5, 2, v4")
    a("v_lshl_add_u32 v3, v2, 4, v3")
    a("v_mul_lo_u32 v5, v3, s20")
    a("v_lshl_add_u32 v14, v4, 4, v5")
    a("s_lshl_b32 s25, s20, 2")
    for jj in range(1, 4):
        a(f"v_add_u32 v{14+jj}, s25, v{13+jj}")
    a("v_and_b32 v3, 31, v1")
    a("v_lshrrev_b32 v4, 1, v2")
    a("v_lshl_add_u32 v3, v4, 6, v3")
    a("v_lshrrev_b32 v5, 5, v1")
    a("v_lshrrev_b32 v6, 1, v3")
    a("v_and_b32 v6, 7, v6")
    a("v_lshlrev_b32 v7, 7, v3")
    for ks in range(4):
        a(f"v_add_u32 v8, {2*ks}, v5")
        a("v_xor_b32 v8, v8, v6")
        a(f"v_lshl_add_u32 v{18+ks}, v8, 4, v7")
    a("v_and_b32 v3, 15, v1")
    a("v_lshrrev_b32 v4, 2, v3")
    a("v_lshl_add_u32 v6, v5, 3, v4")
    a("v_lshlrev_b32 v6, 8, v6")
    a("v_and_b32 v7, 3, v3")
    a("v_lshl_add_u32 v6, v7, 3, v6")
    a("v_lshrrev_b32 v7, 4, v1")
    a("v_and_b32 v7, 1, v7")
    a("v_lshl_add_u32 v6, v7, 5, v6")
    a("v_add_u32 v6, 16384, v6")
    a("v_and_b32 v7, 1, v2")
    for nsub in range(2):
        a(f"v_lshl_add_u32 v8, v7, 1, {nsub}")
        a("v_xor_b32 v8, v8, v4")
        a(f"v_lshl_add_u32 v{22+nsub}, v8, 6, v6")
    for r in range(64, 128):
        a(f"v_mov_b32 v{r}, 0")
    a("s_mov_b32 s30, 0")
    a("s_lshl_b32 s31, s22, 12")
    a("s_cmp_eq_u32 s36, 2")
    a(f"s_cbranch_scc1 {name}_T")
    body(a, name, "N")
    a(f"s_branch {name}_end")
    body(a, name, "T")
    a.label(f"{name}_end")
    a("s_endpgm")
    kernel_desc(a, name, 128)

def dma_stage(a):
    a("s_add_u32 s25, s30, s31")
    for jj in range(4):
        a(f"s_add_u32 m0, s25, {jj*1024}")
        a("s_nop 0")
        a(f"buffer_load_dwordx4 v{10+jj}, s[4:7], s16 offen lds")
    for jj in range(4):
        a(f"s_add_u32 m0, s25, {16384 + jj*1024}")
        a("s_nop 0")
        a(f"buffer_load_dwordx4 v{14+jj}, s[8:11], s17 offen lds")
    a("s_add_u32 s16, s16, 128")
    a("s_add_u32 s17, s17, s23")
    a("s_xor_b32 s30, s30, 32768")

XF = 24
WF = 40
def read_frags(a, ks, st):
    for m in range(2):
        a(f"ds_read_b128 {vr(XF+st*8+m*4,4)}, v{18+ks} offset:{m*4096}")
    for n in range(2):
        for u in range(2):
            a(f"ds_read_b64_tr_b16 {vr(WF+st*8+n*4+u*2,2)}, v{22+n} offset:{ks*4096+u*1024}")

def body(a, name, mode):
    L = f"{name}_{mode}"
    a.label(L)
    dma_stage(a)
    a.label(L + "_loop")
    a("s_waitcnt vmcnt(0)")
    a("s_barrier")
    read_frags(a, 0, 0)
    a("s_cmp_le_u32 s18, 1")
    a(f"s_cbranch_scc1 {L}_nodma")
    dma_stage(a)
    a.label(L + "_nodma")
    for ks in range(4):
        if ks < 3:
            read_frags(a, ks + 1, (ks + 1) & 1)
            a("s_waitcnt lgkmcnt(6)")
        else:
            a("s_waitcnt lgkmcnt(0)")
        st = ks & 1
        for m in range(2):
            for n in range(2):
                acc = vr(64 + (m*2+n)*16, 16)
                xf = vr(XF+st*8+m*4, 4); wf = vr(WF+st*8+n*4, 4)
                if mode == "N":
                    a(f"v_mfma_f32_32x32x16_bf16 {acc}, {wf}, {xf}, {acc}")
                else:
                    a(f"v_mfma_f32_32x32x16_bf16 {acc}, {xf}, {wf}, {acc}")
    for r in range(18, 24):
        a(f"v_xor_b32 v{r}, 32768, v{r}")
    a("s_sub_u32 s18, s18, 1")
    a("s_cmp_lg_u32 s18, 0")
    a(f"s_cbranch_scc1 {L}_loop")
    a("s_nop 15")
    if mode == "N":
        a("v_and_b32 v3, 31, v1")
        a("v_lshrrev_b32 v4, 1, v2")
        a("v_lshl_add_u32 v3, v4, 6, v3")
        a("v_mul_lo_u32 v3, v3, s21")
        a("v_and_b32 v4, 1, v2")
        a("v_lshl_add_u32 v3, v4, 7, v3")
        a("v_lshrrev_b32 v4, 5, v1")
        a("v_lshl_add_u32 v3, v4, 3, v3")
        a("s_mul_i32 s25, s35, 128")
        a("s_mul_i32 s25, s25, s21")
        a("s_lshl_b32 s26, s38, 8")
        a("s_add_u32 s25, s25, s26")
        a("s_lshl_b32 s26, s21, 5")
        a("s_add_u32 s26, s26, s25")
        for m in range(2):
            for n in range(2):
                b = 64 + (m*2+n)*16
                for g in range(4):
                    for r in range(4):
                        a(f"v_max_f32 v{b+g*4+r}, s24, v{b+g*4+r}")
                    a(f"v_cvt_pk_bf16_f32 v{b+g*4}, v{b+g*4}, v{b+g*4+1}")
                    a(f"v_cvt_pk_bf16_f32 v{b+g*4+1}, v{b+g*4+2}, v{b+g*4+3}")
                    a(f"buffer_store_dwordx2 {vr(b+g*4,2)}, v3, s[12:15], s{25+m} offen offset:{(n*32+8*g)*2}")
    else:
        a("v_and_b32 v3, 31, v1")
        a("v_and_b32 v4, 1, v2")
        a("v_lshl_add_u32 v3, v4, 6, v3")
        a("v_lshlrev_b32 v3, 12, v3")
        a("v_lshrrev_b32 v4, 1, v2")
        a("v_lshl_add_u32 v3, v4, 7, v3")
        a("v_lshrrev_b32 v4, 5, v1")
        a("v_lshl_add_u32 v3, v4, 4, v3")
        a("s_lshl_b32 s25, s38, 19")
        a("s_lshl_b32 s26, s35, 8")
        a("s_add_u32 s25, s25, s26")
        a(f"s_add_u32 s26, s25, {32*4096}")
        for m in range(2):
            for n in range(2):
                b = 64 + (m*2+n)*16
                for g in range(4):
                    a(f"v_cvt_pk_bf16_f32 v{b+g*4}, v{b+g*4}, v{b+g*4+1}")
                    a(f"v_cvt_pk_bf16_f32 v{b+g*4+1}, v{b+g*4+2}, v{b+g*4+3}")
                    off = (m*32 + (g>>1)*16 + (g&1)*4) * 2
                    a(f"buffer_store_dwordx2 {vr(b+g*4,2)}, v3, s[12:15], s{25+n} offen offset:{off}")
    a("s_waitcnt vmcnt(0)")
```

```python
from asmlib import *
from k1 import WS_Q, WS_K, WS_VT, WS_CTX

C_SCALE = 0x3e0293ee
import struct, math
C_SCALE = struct.unpack("<I", struct.pack("<f", (128 ** -0.5) * math.log2(math.e)))[0]

QF = 32
SA = 64
OA = 96
FR = 160
PP = 176
VKA = 8
VVA = 16
VKD = 20
VVD = 24
VM, VL, VT0, VT1, VAL, VNMC, VDQ = 192, 193, 194, 195, 196, 197, 198
NV = 200

def gen_k2(a, name="k2_kernel"):
    kernel_header(a, name)
    a("s_cmp_ge_u32 s2, 512")
    a(f"s_cbranch_scc1 {name}_end")
    a("s_load_dwordx2 s[32:33], s[0:1], 96")
    a("s_lshr_b32 s34, s2, 5")
    a("s_and_b32 s35, s2, 31")
    a("s_sub_u32 s36, 15, s34")
    a("s_sub_u32 s37, s34, 8")
    a("s_cmp_lt_u32 s34, 8")
    a("s_cselect_b32 s36, s36, s37")
    a("s_lshl_b32 s18, s36, 1")
    a("s_add_u32 s18, s18, 2")
    a("s_waitcnt lgkmcnt(0)")
    for d, off in ((4, WS_K), (8, WS_VT), (12, WS_Q), (40, WS_CTX)):
        a(f"s_add_u32 s{d}, s32, {off}" if off else f"s_mov_b32 s{d}, s32")
        a(f"s_addc_u32 s{d+1}, s33, 0" if off else f"s_mov_b32 s{d+1}, s33")
        a(f"s_mov_b32 s{d+2}, 16777216")
        a(f"s_mov_b32 s{d+3}, 0x00020000")
    a("v_and_b32 v1, 63, v0")
    a("v_lshrrev_b32 v2, 6, v0")
    a("s_nop 0")
    a("v_readfirstlane_b32 s22, v2")
    a("v_lshrrev_b32 v3, 4, v1")
    a("v_lshl_add_u32 v3, v2, 4, v3")
    a("v_and_b32 v4, 15, v1")
    for jj in range(4):
        a(f"v_add_u32 v5, {jj*4}, v3")
        a("v_and_b32 v6, 15, v5")
        a("v_xor_b32 v6, v6, v4")
        a("v_lshlrev_b32 v5, 13, v5")
        a(f"v_lshl_add_u32 v{VKD+jj}, v6, 4, v5")
    a("v_lshrrev_b32 v3, 3, v1")
    a("v_lshl_add_u32 v3, v2, 5, v3")
    a("v_and_b32 v4, 7, v1")
    for jj in range(4):
        a(f"v_add_u32 v5, {jj*8}, v3")
        a("v_lshrrev_b32 v6, 1, v5")
        a("v_and_b32 v6, 7, v6")
        a("v_xor_b32 v6, v6, v4")
        a("v_lshlrev_b32 v5, 12, v5")
        a(f"v_lshl_add_u32 v{VVD+jj}, v6, 4, v5")
    a("v_and_b32 v3, 31, v1")
    a("v_lshrrev_b32 v5, 5, v1")
    a("v_and_b32 v6, 15, v3")
    a("v_lshlrev_b32 v7, 8, v3")
    for ks in range(8):
        a(f"v_add_u32 v{VT0}, {2*ks}, v5")
        a(f"v_xor_b32 v{VT0}, v{VT0}, v6")
        a(f"v_lshl_add_u32 v{VKA+ks}, v{VT0}, 4, v7")
    a("v_lshrrev_b32 v6, 1, v3")
    a("v_and_b32 v6, 7, v6")
    a("v_lshlrev_b32 v7, 7, v3")
    a("v_add_u32 v7, 16384, v7")
    for ks in range(4):
        a(f"v_add_u32 v{VT0}, {2*ks}, v5")
        a(f"v_xor_b32 v{VT0}, v{VT0}, v6")
        a(f"v_lshl_add_u32 v{VVA+ks}, v{VT0}, 4, v7")
    a("s_lshl_b32 s25, s36, 7")
    a("v_lshl_add_u32 v3, v2, 5, v3")
    a("v_add_u32 v3, s25, v3")
    a(f"v_mov_b32 v{VDQ}, v3")
    a("v_lshlrev_b32 v4, 13, v3")
    a("v_lshl_add_u32 v4, v5, 4, v4")
    a("s_lshl_b32 s25, s35, 8")
    for ks in range(8):
        a(f"buffer_load_dwordx4 {vr(QF+ks*4,4)}, v4, s[12:15], s25 offen offset:{ks*32}")
    a(f"v_lshlrev_b32 v6, 2, v5")
    a(f"v_sub_u32 v{VDQ}, v{VDQ}, v6")
    for r in range(OA, OA + 64):
        a(f"v_mov_b32 v{r}, 0")
    a(f"v_mov_b32 v{VM}, 0xff800000")
    a(f"v_mov_b32 v{VL}, 0")
    a("s_lshl_b32 s16, s35, 8")
    a("s_lshl_b32 s17, s35, 19")
    a("s_mov_b32 s30, 0")
    a("s_lshl_b32 s31, s22, 12")
    a("s_mov_b32 s19, 0")
    a(f"s_mov_b32 s21, 0x{C_SCALE:08x}")
    dma(a)
    a("s_sub_u32 s20, s18, 2")
    a.label(f"{name}_loop")
    a("s_cmp_ge_u32 s19, s20")
    a(f"s_cbranch_scc1 {name}_mloop")
    tile(a, name, False)
    a(f"s_branch {name}_loop")
    a.label(f"{name}_mloop")
    tile(a, name, True)
    a("s_cmp_lt_u32 s19, s18")
    a(f"s_cbranch_scc1 {name}_mloop")
    a(f"v_mov_b32 v{VT0}, v{VL}")
    a("s_nop 1")
    a(f"v_permlane32_swap_b32 v{VL}, v{VT0}")
    a("s_nop 1")
    a(f"v_add_f32 v{VL}, v{VL}, v{VT0}")
    a(f"v_rcp_f32 v{VL}, v{VL}")
    a("s_nop 0")
    for r in range(OA, OA + 64):
        a(f"v_mul_f32 v{r}, v{r}, v{VL}")
    a("v_lshlrev_b32 v3, 13, v3")
    a("v_lshl_add_u32 v3, v5, 3, v3")
    a("s_lshl_b32 s25, s35, 8")
    for dt in range(4):
        for g in range(4):
            b = OA + dt*16 + g*4
            a(f"v_cvt_pk_bf16_f32 v{b}, v{b}, v{b+1}")
            a(f"v_cvt_pk_bf16_f32 v{b+1}, v{b+2}, v{b+3}")
            a(f"buffer_store_dwordx2 {vr(b,2)}, v3, s[40:43], s25 offen offset:{(dt*32+8*g)*2}")
    a("s_waitcnt vmcnt(0)")
    a.label(f"{name}_end")
    a("s_endpgm")
    kernel_desc(a, name, NV)

def dma(a):
    a("s_add_u32 s25, s30, s31")
    for jj in range(4):
        a(f"s_add_u32 m0, s25, {jj*1024}")
        a("s_nop 0")
        a(f"buffer_load_dwordx4 v{VKD+jj}, s[4:7], s16 offen lds")
    for jj in range(4):
        a(f"s_add_u32 m0, s25, {16384+jj*1024}")
        a("s_nop 0")
        a(f"buffer_load_dwordx4 v{VVD+jj}, s[8:11], s17 offen lds")
    a(f"s_add_u32 s16, s16, {64*8192}")
    a("s_add_u32 s17, s17, 128")
    a("s_xor_b32 s30, s30, 32768")

def tile(a, name, masked):
    tag = "m" if masked else "u"
    a("s_waitcnt vmcnt(0)")
    a("s_barrier")
    qk = [(t, ks) for ks in range(8) for t in range(2)]
    def rdK(i):
        t, ks = qk[i]
        a(f"ds_read_b128 {vr(FR+(i&3)*4,4)}, v{VKA+ks} offset:{t*8192}")
    for i in range(4):
        rdK(i)
    a("s_add_u32 s25, s19, 1")
    a("s_cmp_ge_u32 s25, s18")
    a(f"s_cbranch_scc1 {name}_nodma_{tag}")
    dma(a)
    a.label(f"{name}_nodma_{tag}")
    for i, (t, ks) in enumerate(qk):
        a(f"s_waitcnt lgkmcnt({min(3, 15-i)})")
        acc = vr(SA+t*16, 16)
        cin = acc if ks > 0 else "0"
        a(f"v_mfma_f32_32x32x16_bf16 {acc}, {vr(FR+(i&3)*4,4)}, {vr(QF+ks*4,4)}, {cin}")
        if i + 4 < 16:
            rdK(i + 4)
    pv = [(dt, ks) for ks in range(4) for dt in range(4)]
    def rdV(i):
        dt, ks = pv[i]
        a(f"ds_read_b128 {vr(FR+(i&3)*4,4)}, v{VVA+ks} offset:{dt*4096}")
    for i in range(4):
        rdV(i)
    a("s_nop 7")
    a("s_nop 7")
    if masked:
        a("s_lshl_b32 s25, s19, 6")
        a(f"v_subrev_u32 v{VT0}, s25, v{VDQ}")
        a(f"v_mov_b32 v{VT1}, 0xff800000")
        for t in range(2):
            for r in range(16):
                cst = t*32 + (r & 3) + 8*(r >> 2)
                a(f"v_cmp_gt_i32 vcc, {cst}, v{VT0}")
                a("s_nop 1")
                a(f"v_cndmask_b32 v{SA+t*16+r}, v{SA+t*16+r}, v{VT1}, vcc")
    a(f"v_max3_f32 v{VT0}, v{SA}, v{SA+1}, v{SA+2}")
    for i in range(3, 31, 2):
        a(f"v_max3_f32 v{VT0}, v{VT0}, v{SA+i}, v{SA+i+1}")
    a(f"v_max_f32 v{VT0}, v{VT0}, v{SA+31}")
    a(f"v_mov_b32 v{VT1}, v{VT0}")
    a("s_nop 1")
    a(f"v_permlane32_swap_b32 v{VT0}, v{VT1}")
    a("s_nop 1")
    a(f"v_max3_f32 v{VT0}, v{VT0}, v{VT1}, v{VM}")
    a(f"v_sub_f32 v{VAL}, v{VM}, v{VT0}")
    a(f"v_mul_f32 v{VAL}, s21, v{VAL}")
    a(f"v_exp_f32 v{VAL}, v{VAL}")
    a(f"v_mov_b32 v{VM}, v{VT0}")
    a(f"v_mul_f32 v{VNMC}, s21, v{VT0}")
    a(f"v_sub_f32 v{VNMC}, 0, v{VNMC}")
    for i in range(32):
        a(f"v_fma_f32 v{SA+i}, v{SA+i}, s21, v{VNMC}")
    for i in range(32):
        a(f"v_exp_f32 v{SA+i}, v{SA+i}")
    a(f"v_mul_f32 v{VL}, v{VL}, v{VAL}")
    for i in range(32):
        a(f"v_add_f32 v{VL}, v{VL}, v{SA+i}")
    for r in range(OA, OA+64):
        a(f"v_mul_f32 v{r}, v{r}, v{VAL}")
    for i in range(16):
        a(f"v_cvt_pk_bf16_f32 v{PP+i}, v{SA+2*i}, v{SA+2*i+1}")
    a("s_nop 1")
    for i, (dt, ks) in enumerate(pv):
        a(f"s_waitcnt lgkmcnt({min(3, 15-i)})")
        acc = vr(OA+dt*16, 16)
        a(f"v_mfma_f32_32x32x16_bf16 {acc}, {vr(FR+(i&3)*4,4)}, {vr(PP+ks*4,4)}, {acc}")
        if i + 4 < 16:
            rdV(i + 4)
    for r in list(range(VKA, VKA+8)) + list(range(VVA, VVA+4)):
        a(f"v_xor_b32 v{r}, 32768, v{r}")
    a("s_add_u32 s19, s19, 1")
```

```python
from asmlib import *
from k1 import WS_H, WS_CTX, WS_PART

NSPLIT = 5
XF = 24
WF = 40
ACC = 64
def gen_k3(a, name="k3_kernel"):
    kernel_header(a, name)
    a(f"s_cmp_ge_u32 s2, {48*NSPLIT}")
    a(f"s_cbranch_scc1 {name}_end")
    a("s_load_dwordx2 s[32:33], s[0:1], 96")
    a("s_load_dwordx2 s[26:27], s[0:1], 40")
    a("s_load_dwordx2 s[28:29], s[0:1], 64")
    a("s_mul_i32 s34, s2, 1366")
    a("s_lshr_b32 s34, s34, 16")
    a("s_mul_i32 s35, s34, 48")
    a("s_sub_u32 s35, s2, s35")
    a("s_lshr_b32 s36, s35, 4")
    a("s_and_b32 s35, s35, 15")
    a("s_waitcnt lgkmcnt(0)")
    a("s_cmp_lt_u32 s34, 2")
    a(f"s_mov_b32 s41, {WS_H}")
    a(f"s_cselect_b32 s40, {WS_CTX}, s41")
    a("s_add_u32 s4, s32, s40")
    a("s_addc_u32 s5, s33, 0")
    a("s_cmp_lt_u32 s34, 2")
    a("s_mov_b32 s41, 18874368")
    a("s_cselect_b32 s6, 16777216, s41")
    a("s_mov_b32 s7, 0x00020000")
    a("s_mov_b32 s41, 9216")
    a("s_cselect_b32 s19, 8192, s41")
    a("s_cselect_b32 s8, s26, s28")
    a("s_cselect_b32 s9, s27, s29")
    a("s_mov_b32 s41, 5308416")
    a("s_cselect_b32 s10, 4718592, s41")
    a("s_mov_b32 s11, 0x00020000")
    a("s_cselect_b32 s18, 32, 24")
    a("s_sub_u32 s41, s34, 2")
    a("s_cselect_b32 s41, s34, s41")
    a("s_mul_i32 s41, s41, s18")
    a("s_mov_b32 s20, 1152")
    a("s_mov_b32 s23, 73728")
    a("s_mul_i32 s16, s35, 128")
    a("s_mul_i32 s16, s16, s19")
    a("s_lshl_b32 s25, s41, 7")
    a("s_add_u32 s16, s16, s25")
    a("s_mul_i32 s17, s41, s23")
    a("s_mul_i32 s25, s36, 384")
    a("s_add_u32 s17, s17, s25")
    a("s_mul_i32 s25, s34, 4718592")
    a(f"s_add_u32 s25, s25, {WS_PART}")
    a("s_add_u32 s12, s32, s25")
    a("s_addc_u32 s13, s33, 0")
    a("s_mov_b32 s14, 4718592")
    a("s_mov_b32 s15, 0x00020000")
    a("v_and_b32 v1, 63, v0")
    a("v_lshrrev_b32 v2, 6, v0")
    a("s_nop 0")
    a("v_readfirstlane_b32 s22, v2")
    a("v_lshrrev_b32 v3, 3, v1")
    a("v_lshl_add_u32 v3, v2, 5, v3")
    a("v_and_b32 v4, 7, v1")
    for jj in range(4):
        a(f"v_add_u32 v5, {jj*8}, v3")
        a("v_lshrrev_b32 v6, 1, v5")
        a("v_and_b32 v6, 7, v6")
        a("v_xor_b32 v6, v4, v6")
        a("v_mul_lo_u32 v5, v5, s19")
        a(f"v_lshl_add_u32 v{10+jj}, v6, 4, v5")
    a("v_mul_u32_u24 v3, 384, v2")
    a("v_add_u32 v3, v3, v1")
    a("s_movk_i32 s25, 2731")
    for jj in range(6):
        a(f"v_add_u32 v4, {jj*64}, v3")
        a("v_mul_lo_u32 v5, v4, s25")
        a("v_lshrrev_b32 v5, 16, v5")
        a("v_mul_u32_u24 v6, 24, v5")
        a("v_sub_u32 v4, v4, v6")
        a("v_lshrrev_b32 v6, 2, v4")
        a("v_lshrrev_b32 v7, 1, v5")
        a("v_and_b32 v7, 1, v7")
        a("v_xor_b32 v6, v6, v7")
        a("v_and_b32 v4, 3, v4")
        a("v_lshl_add_u32 v4, v6, 2, v4")
        a("v_mul_u32_u24 v5, 1152, v5")
        a(f"v_lshl_add_u32 v{160+jj}, v4, 4, v5")
    a("v_and_b32 v3, 31, v1")
    a("v_lshrrev_b32 v4, 1, v2")
    a("v_lshl_add_u32 v3, v4, 6, v3")
    a("v_lshrrev_b32 v5, 5, v1")
    a("v_lshrrev_b32 v6, 1, v3")
    a("v_and_b32 v6, 7, v6")
    a("v_lshlrev_b32 v7, 7, v3")
    for ks in range(4):
        a(f"v_add_u32 v8, {2*ks}, v5")
        a("v_xor_b32 v8, v8, v6")
        a(f"v_lshl_add_u32 v{18+ks}, v8, 4, v7")
    a("v_and_b32 v3, 15, v1")
    a("v_lshrrev_b32 v4, 2, v3")
    a("v_lshl_add_u32 v6, v5, 3, v4")
    a("v_mul_u32_u24 v6, 384, v6")
    a("v_and_b32 v7, 3, v3")
    a("v_lshl_add_u32 v6, v7, 3, v6")
    a("v_lshrrev_b32 v7, 4, v1")
    a("v_and_b32 v7, 1, v7")
    a("v_lshl_add_u32 v6, v7, 5, v6")
    a("v_add_u32 v6, 16384, v6")
    a("v_lshrrev_b32 v4, 3, v3")
    a("v_and_b32 v7, 1, v2")
    a("v_mul_u32_u24 v7, 3, v7")
    for nsub in range(3):
        a(f"v_add_u32 v8, {nsub}, v7")
        a("v_xor_b32 v8, v8, v4")
        a(f"v_lshl_add_u32 v{166+nsub}, v8, 6, v6")
    for r in range(ACC, ACC + 96):
        a(f"v_mov_b32 v{r}, 0")
    a("s_mov_b32 s30, 0")
    a("s_mov_b32 s27, 40960")
    a("s_lshl_b32 s31, s22, 12")
    a("s_mul_i32 s24, s22, 6144")
    L = name
    dma(a)
    a.label(L + "_loop")
    a("s_waitcnt vmcnt(0)")
    a("s_barrier")
    rd(a, 0, 0)
    a("s_cmp_le_u32 s18, 1")
    a(f"s_cbranch_scc1 {L}_nodma")
    dma(a)
    a.label(L + "_nodma")
    for ks in range(4):
        if ks < 3:
            rd(a, ks + 1, (ks + 1) & 1)
            a("s_waitcnt lgkmcnt(8)")
        else:
            a("s_waitcnt lgkmcnt(0)")
        st = ks & 1
        for m in range(2):
            for n in range(3):
                acc = vr(ACC + (m*3+n)*16, 16)
                a(f"v_mfma_f32_32x32x16_bf16 {acc}, {vr(WF+st*12+n*4,4)}, {vr(XF+st*8+m*4,4)}, {acc}")
    for r in list(range(18, 22)) + list(range(166, 169)):
        a(f"v_add_u32 v{r}, s27, v{r}")
    a("s_sub_u32 s27, 0, s27")
    a("s_sub_u32 s18, s18, 1")
    a("s_cmp_lg_u32 s18, 0")
    a(f"s_cbranch_scc1 {L}_loop")
    a("s_nop 15")
    a("v_and_b32 v3, 31, v1")
    a("v_lshrrev_b32 v4, 1, v2")
    a("v_lshl_add_u32 v3, v4, 6, v3")
    a("v_mul_u32_u24 v3, 2304, v3")
    a("v_and_b32 v4, 1, v2")
    a("v_mul_u32_u24 v4, 384, v4")
    a("v_add_u32 v3, v3, v4")
    a("v_lshrrev_b32 v4, 5, v1")
    a("v_lshl_add_u32 v3, v4, 4, v3")
    a("s_mul_i32 s25, s35, 294912")
    a("s_mul_i32 s26, s36, 768")
    a("s_add_u32 s25, s25, s26")
    a(f"s_add_u32 s26, s25, {32*2304}")
    for m in range(2):
        for n in range(3):
            b = ACC + (m*3+n)*16
            for g in range(4):
                a(f"buffer_store_dwordx4 {vr(b+g*4,4)}, v3, s[12:15], s{25+m} offen offset:{(n*32+8*g)*4}")
    a("s_waitcnt vmcnt(0)")
    a.label(f"{name}_end")
    a("s_endpgm")
    kernel_desc(a, name, 176)

def dma(a):
    a("s_add_u32 s25, s30, s31")
    for jj in range(4):
        a(f"s_add_u32 m0, s25, {jj*1024}")
        a("s_nop 0")
        a(f"buffer_load_dwordx4 v{10+jj}, s[4:7], s16 offen lds")
    a("s_add_u32 s25, s30, s24")
    for jj in range(6):
        a(f"s_add_u32 m0, s25, {16384 + jj*1024}")
        a("s_nop 0")
        a(f"buffer_load_dwordx4 v{160+jj}, s[8:11], s17 offen lds")
    a("s_add_u32 s16, s16, 128")
    a("s_add_u32 s17, s17, s23")
    a(f"s_xor_b32 s30, s30, 0x{40960:x}")

def rd(a, ks, st):
    for m in range(2):
        a(f"ds_read_b128 {vr(XF+st*8+m*4,4)}, v{18+ks} offset:{m*4096}")
    for n in range(3):
        for u in range(2):
            a(f"ds_read_b64_tr_b16 {vr(WF+st*12+n*4+u*2,2)}, v{166+n} offset:{ks*6144+u*1536}")

def gen_k4(a, name="k4_kernel"):
    kernel_header(a, name)
    a("s_cmp_ge_u32 s2, 512")
    a(f"s_cbranch_scc1 {name}_end")
    a("s_load_dwordx2 s[32:33], s[0:1], 96")
    a("s_load_dwordx2 s[26:27], s[0:1], 0")
    a("s_load_dwordx2 s[28:29], s[0:1], 72")
    a("s_load_dwordx2 s[30:31], s[0:1], 80")
    a("s_waitcnt lgkmcnt(0)")
    make_srd(a, 4, 26, 2359296)
    make_srd(a, 8, 28, 1152)
    make_srd(a, 12, 30, 2359296)
    a(f"s_add_u32 s16, s32, {WS_PART}")
    a("s_addc_u32 s17, s33, 0")
    a(f"s_mov_b32 s18, {NSPLIT*4718592}")
    a("s_mov_b32 s19, 0x00020000")
    a("v_and_b32 v1, 63, v0")
    a("v_lshrrev_b32 v2, 6, v0")
    a("s_lshl_b32 s20, s2, 2")
    a("v_add_u32 v2, s20, v2")
    a("v_mul_u32_u24 v3, 1152, v2")
    a("v_lshl_add_u32 v3, v1, 1, v3")
    a("v_lshlrev_b32 v4, 1, v1")
    for i in range(9):
        a(f"buffer_load_ushort v{8+i}, v3, s[4:7], 0 offen offset:{i*128}")
        a(f"buffer_load_ushort v{20+i}, v4, s[8:11], 0 offen offset:{i*128}")
    a("v_mul_u32_u24 v5, 2304, v2")
    a("v_lshl_add_u32 v5, v1, 2, v5")
    for s in range(NSPLIT):
        a(f"s_mov_b32 s21, {s*4718592}")
        for i in range(9):
            a(f"buffer_load_dword v{32+s*9+i}, v5, s[16:19], s21 offen offset:{i*256}")
    a(f"s_waitcnt vmcnt({NSPLIT*9})")
    a("v_mov_b32 v6, 0")
    for i in range(9):
        a(f"v_lshlrev_b32 v{8+i}, 16, v{8+i}")
        a(f"v_lshlrev_b32 v{20+i}, 16, v{20+i}")
        a(f"v_mul_f32 v{8+i}, v{8+i}, v{20+i}")
        a(f"v_cvt_pk_bf16_f32 v{8+i}, v{8+i}, v{8+i}")
        a(f"v_lshlrev_b32 v{8+i}, 16, v{8+i}")
        a(f"v_add_f32 v6, v6, v{8+i}")
    for off in (0x041F, 0x081F, 0x101F, 0x201F, 0x401F):
        a(f"ds_swizzle_b32 v7, v6 offset:0x{off:04x}")
        a("s_waitcnt lgkmcnt(0)")
        a("v_add_f32 v6, v6, v7")
    a("v_mov_b32 v7, v6")
    a("s_nop 1")
    a("v_permlane32_swap_b32 v6, v7")
    a("s_nop 1")
    a("v_add_f32 v6, v6, v7")
    a("v_cvt_pk_bf16_f32 v6, v6, v6")
    a("v_lshlrev_b32 v6, 16, v6")
    a("v_mul_f32 v6, 0xbfb8aa3b, v6")
    a("v_exp_f32 v6, v6")
    a("s_nop 0")
    a("v_add_f32 v6, 1.0, v6")
    a("v_rcp_f32 v6, v6")
    a("s_nop 0")
    a("v_cvt_pk_bf16_f32 v6, v6, v6")
    a("v_lshlrev_b32 v6, 16, v6")
    a("v_sub_f32 v7, 1.0, v6")
    a("v_cvt_pk_bf16_f32 v7, v7, v7")
    a("v_lshlrev_b32 v7, 16, v7")
    a("s_waitcnt vmcnt(0)")
    a("v_mul_u32_u24 v3, 1152, v2")
    a("v_lshl_add_u32 v3, v1, 1, v3")
    def rb(r):
        a(f"v_cvt_pk_bf16_f32 v{r}, v{r}, v{r}")
        a(f"v_lshlrev_b32 v{r}, 16, v{r}")
    for i in range(9):
        a(f"v_add_f32 v{32+i}, v{32+i}, v{41+i}")
        a(f"v_add_f32 v{50+i}, v{50+i}, v{59+i}")
        a(f"v_add_f32 v{50+i}, v{50+i}, v{68+i}")
        rb(32+i); rb(50+i)
        a(f"v_mul_f32 v{32+i}, v{32+i}, v6")
        a(f"v_mul_f32 v{50+i}, v{50+i}, v7")
        rb(32+i); rb(50+i)
        a(f"v_add_f32 v{32+i}, v{32+i}, v{50+i}")
        a(f"v_cvt_pk_bf16_f32 v{32+i}, v{32+i}, v{32+i}")
        a(f"buffer_store_short v{32+i}, v3, s[12:15], 0 offen offset:{i*128}")
    a("s_waitcnt vmcnt(0)")
    a.label(f"{name}_end")
    a("s_endpgm")
    kernel_desc(a, name, 80)
```

```python
import sys
from asmlib import *
from k1 import *
from k2 import *
from k3 import *
a = Asm()
hdr = open("gated_mix__compressed_kv_cla__dense_activation_relu__prompt.s.ref").read().split("\n")
for l in hdr:
    if l.startswith("; @launch") or not l.startswith(";"):
        break
    a.raw(l)
a.raw("; @launch kernel=k1_kernel grid=(2112,1,1) block=(256,1,1) lds=65536")
a.raw("; @launch kernel=k2_kernel grid=(512,1,1) block=(256,1,1) lds=65536")
a.raw(f"; @launch kernel=k3_kernel grid=({48*NSPLIT},1,1) block=(256,1,1) lds=81920")
a.raw("; @launch kernel=k4_kernel grid=(512,1,1) block=(256,1,1) lds=0")
a.raw('.amdgcn_target "amdgcn-amd-amdhsa--gfx950"')
a.raw(".text")
gen_k1(a)
gen_k2(a)
gen_k3(a)
gen_k4(a)
out = sys.argv[1] if len(sys.argv) > 1 else "gated_mix__compressed_kv_cla__dense_activation_relu__prompt.s"
open(out, "w").write(a.text())
```

```python
from asmlib import *

class Gemm:
    def __init__(self, a, pfx, WM, WN, NST, mode="N", epi="bf16"):
        self.a = a; self.pfx = pfx; self.WM = WM; self.WN = WN; self.NST = NST
        self.mode = mode; self.epi = epi
        import os
        self.abl = os.environ.get("ABL", "")
        self.BM = 64 * WM; self.BN = 64 * WN
        self.XB = self.BM * 128; self.WB = 64 * self.BN * 2
        self.SB = self.XB + self.WB
        self.nxd = self.BM // 32; self.nwd = self.BN // 32
        v = 8
        self.VXD = v; v += self.nxd
        self.VWD = v; v += self.nwd
        self.VXA = v; v += 4 * NST
        self.VWA = v; v += WN * NST
        v = (v + 3) // 4 * 4
        self.XF = v; v += 2 * WM * 4
        self.WF = v; v += 2 * WN * 4
        self.ACC = v; v += WM * WN * 16
        self.NV = v
        self.lds = self.SB * NST

    def setup(self):
        a = self.a; WM, WN = self.WM, self.WN
        a("v_and_b32 v1, 63, v0")
        a("v_lshrrev_b32 v2, 6, v0")
        a("s_nop 0")
        a("v_readfirstlane_b32 s22, v2")
        a("v_lshrrev_b32 v3, 3, v1")
        a(f"v_mul_u32_u24 v4, {self.BM//4}, v2")
        a("v_add_u32 v3, v3, v4")
        a("v_and_b32 v4, 7, v1")
        for jj in range(self.nxd):
            a(f"v_add_u32 v5, {jj*8}, v3")
            a("v_lshrrev_b32 v6, 1, v5")
            a("v_and_b32 v6, 7, v6")
            a("v_xor_b32 v6, v4, v6")
            a("v_mul_lo_u32 v5, v5, s19")
            a(f"v_lshl_add_u32 v{self.VXD+jj}, v6, 4, v5")
        if self.BN == 128:
            a("v_lshrrev_b32 v3, 4, v1")
            a("v_and_b32 v4, 15, v1")
            a("v_lshrrev_b32 v5, 2, v4")
            a("v_xor_b32 v5, v5, v3")
            a("v_and_b32 v4, 3, v4")
            a("v_lshl_add_u32 v4, v5, 2, v4")
            a("v_lshl_add_u32 v3, v2, 4, v3")
            a("v_mul_lo_u32 v5, v3, s20")
            a(f"v_lshl_add_u32 v{self.VWD}, v4, 4, v5")
            a("s_lshl_b32 s25, s20, 2")
            for jj in range(1, 4):
                a(f"v_add_u32 v{self.VWD+jj}, s25, v{self.VWD+jj-1}")
        else:
            assert self.BN == 192
            a("v_mul_u32_u24 v3, 384, v2")
            a("v_add_u32 v3, v3, v1")
            a("s_movk_i32 s25, 2731")
            for jj in range(6):
                a(f"v_add_u32 v4, {jj*64}, v3")
                a("v_mul_lo_u32 v5, v4, s25")
                a("v_lshrrev_b32 v5, 16, v5")
                a("v_mul_u32_u24 v6, 24, v5")
                a("v_sub_u32 v4, v4, v6")
                a("v_lshrrev_b32 v6, 2, v4")
                a("v_lshrrev_b32 v7, 1, v5")
                a("v_and_b32 v7, 1, v7")
                a("v_xor_b32 v6, v6, v7")
                a("v_and_b32 v4, 3, v4")
                a("v_lshl_add_u32 v4, v6, 2, v4")
                a("v_mul_lo_u32 v5, v5, s20")
                a(f"v_lshl_add_u32 v{self.VWD+jj}, v4, 4, v5")
        a("v_and_b32 v3, 31, v1")
        a("v_lshrrev_b32 v4, 1, v2")
        a(f"v_mul_u32_u24 v4, {32*WM}, v4")
        a("v_add_u32 v3, v3, v4")
        a("v_lshrrev_b32 v5, 5, v1")
        a("v_lshrrev_b32 v6, 1, v3")
        a("v_and_b32 v6, 7, v6")
        a("v_lshlrev_b32 v7, 7, v3")
        for ks in range(4):
            a(f"v_add_u32 v{self.XF}, {2*ks}, v5")
            a(f"v_xor_b32 v{self.XF}, v{self.XF}, v6")
            a(f"v_lshl_add_u32 v{self.VXA+ks}, v{self.XF}, 4, v7")
        rowb = self.BN * 2
        a("v_and_b32 v3, 15, v1")
        a("v_lshrrev_b32 v4, 2, v3")
        a("v_lshl_add_u32 v6, v5, 3, v4")
        a(f"v_mul_u32_u24 v6, {rowb}, v6")
        a("v_and_b32 v7, 3, v3")
        a("v_lshl_add_u32 v6, v7, 3, v6")
        a("v_lshrrev_b32 v7, 4, v1")
        a("v_and_b32 v7, 1, v7")
        a("v_lshl_add_u32 v6, v7, 5, v6")
        a(f"v_add_u32 v6, {self.XB}, v6")
        if self.BN == 192:
            a("v_lshrrev_b32 v4, 3, v3")
        a("v_and_b32 v7, 1, v2")
        a(f"v_mul_u32_u24 v7, {WN}, v7")
        for n in range(WN):
            a(f"v_add_u32 v{self.XF}, {n}, v7")
            a(f"v_xor_b32 v{self.XF}, v{self.XF}, v4")
            a(f"v_lshl_add_u32 v{self.VWA+n}, v{self.XF}, 6, v6")
        for b in range(1, self.NST):
            for ks in range(4):
                a(f"v_add_u32 v{self.VXA+b*4+ks}, {b*self.SB}, v{self.VXA+ks}")
            for n in range(WN):
                a(f"v_add_u32 v{self.VWA+b*WN+n}, {b*self.SB}, v{self.VWA+n}")
        for r in range(self.ACC, self.ACC + WM*WN*16):
            a(f"v_mov_b32 v{r}, 0")
        a(f"s_mul_i32 s30, s22, {self.nxd*1024}")
        a(f"s_mul_i32 s31, s22, {self.nwd*1024}")
        a(f"s_add_u32 s31, s31, {self.XB}")

    def dma(self, buf):
        a = self.a
        if "D" in self.abl:
            a("s_add_u32 s16, s16, 128"); a("s_add_u32 s17, s17, s23"); return
        for jj in range(self.nxd):
            a(f"s_add_u32 m0, s30, {buf*self.SB + jj*1024}")
            a("s_nop 0")
            a(f"buffer_load_dwordx4 v{self.VXD+jj}, s[4:7], s16 offen lds")
        for jj in range(self.nwd):
            a(f"s_add_u32 m0, s31, {buf*self.SB + jj*1024}")
            a("s_nop 0")
            a(f"buffer_load_dwordx4 v{self.VWD+jj}, s[8:11], s17 offen lds")
        a("s_add_u32 s16, s16, 128")
        a("s_add_u32 s17, s17, s23")

    def rd(self, buf, ks, st):
        a = self.a; WM, WN = self.WM, self.WN
        if "C" in self.abl: return
        rowb = self.BN * 2
        for m in range(WM):
            a(f"ds_read_b128 {vr(self.XF+(st*WM+m)*4,4)}, v{self.VXA+buf*4+ks} offset:{m*4096}")
        for n in range(WN):
            for u in range(2):
                a(f"ds_read_b64_tr_b16 {vr(self.WF+(st*WN+n)*4+u*2,2)}, v{self.VWA+buf*WN+n} offset:{(ks*16+u*4)*rowb}")

    def mainloop(self):
        a = self.a; P = self.pfx; NST = self.NST; WM, WN = self.WM, self.WN
        nld = self.nxd + self.nwd
        nrd = WM + 2 * WN
        a("s_mov_b32 s29, s18")
        for b in range(NST - 1):
            self.dma(b)
        a(f"s_sub_u32 s29, s29, {NST-1}")
        a.label(f"{P}_loop")
        for b in range(NST):
            a(f"s_cmp_ge_u32 s18, {NST}")
            a(f"s_cbranch_scc1 {P}_w{b}")
            a("s_waitcnt vmcnt(0)")
            a.label(f"{P}_w{b}")
            a(f"s_waitcnt vmcnt({(NST-2)*nld})")
            a("s_barrier")
            self.rd(b, 0, 0)
            a("s_cmp_eq_u32 s29, 0")
            a(f"s_cbranch_scc1 {P}_nd{b}")
            self.dma((b + NST - 1) % NST)
            a("s_sub_u32 s29, s29, 1")
            a.label(f"{P}_nd{b}")
            for ks in range(4):
                if ks < 3:
                    self.rd(b, ks + 1, (ks + 1) & 1)
                    a(f"s_waitcnt lgkmcnt({nrd})")
                else:
                    a("s_waitcnt lgkmcnt(0)")
                st = ks & 1
                for m in range(WM):
                    for n in range(WN):
                        acc = vr(self.ACC + (m*WN+n)*16, 16)
                        xf = vr(self.XF+(st*WM+m)*4, 4); wf = vr(self.WF+(st*WN+n)*4, 4)
                        if "B" in self.abl:
                            pass
                        elif self.mode == "N":
                            a(f"v_mfma_f32_32x32x16_bf16 {acc}, {wf}, {xf}, {acc}")
                        else:
                            a(f"v_mfma_f32_32x32x16_bf16 {acc}, {xf}, {wf}, {acc}")
            a("s_sub_u32 s18, s18, 1")
            a("s_cmp_eq_u32 s18, 0")
            a(f"s_cbranch_scc1 {P}_done")
        a(f"s_branch {P}_loop")
        a.label(f"{P}_done")
        a("s_nop 15")

    def epilogue_lds(self):
        a = self.a; WM, WN = self.WM, self.WN
        if "A" in self.abl: return
        assert WN == 2
        RS = 272
        nslow = self.BM if self.mode == "N" else self.BN
        nfast = self.BN if self.mode == "N" else self.BM
        assert nfast == 128 or self.mode == "T"
        RS = nfast * 2 + 16
        a("s_barrier")
        a("v_and_b32 v3, 31, v1")
        if self.mode == "N":
            a("v_lshrrev_b32 v4, 1, v2")
            a(f"v_mul_u32_u24 v4, {32*WM}, v4")
            a("v_add_u32 v3, v3, v4")
            a(f"v_mul_u32_u24 v3, {RS}, v3")
            a("v_and_b32 v4, 1, v2")
            a(f"v_lshl_add_u32 v3, v4, 7, v3")
            a("v_lshrrev_b32 v4, 5, v1")
            a("v_lshl_add_u32 v3, v4, 3, v3")
        else:
            a("v_and_b32 v4, 1, v2")
            a("v_lshl_add_u32 v3, v4, 6, v3")
            a(f"v_mul_u32_u24 v3, {RS}, v3")
            a("v_lshrrev_b32 v4, 1, v2")
            a(f"v_mul_u32_u24 v4, {32*WM*2}, v4")
            a("v_add_u32 v3, v3, v4")
            a("v_lshrrev_b32 v4, 5, v1")
            a("v_lshl_add_u32 v3, v4, 4, v3")
        for m in range(WM):
            for n in range(WN):
                b = self.ACC + (m*WN+n)*16
                for g in range(4):
                    if self.mode == "N":
                        for r in range(4):
                            a(f"v_max_f32 v{b+g*4+r}, s24, v{b+g*4+r}")
                    a(f"v_cvt_pk_bf16_f32 v{b+g*4}, v{b+g*4}, v{b+g*4+1}")
                    a(f"v_cvt_pk_bf16_f32 v{b+g*4+1}, v{b+g*4+2}, v{b+g*4+3}")
                    if self.mode == "N":
                        off = m*32*RS + (n*32 + 8*g)*2
                    else:
                        off = n*32*RS + (m*32 + (g>>1)*16 + (g&1)*4)*2
                    a(f"ds_write_b64 v3, {vr(b+g*4,2)} offset:{off}")
        a("s_waitcnt lgkmcnt(0)")
        a("s_barrier")
        cpr = nfast // 8; rpi = 64 // cpr
        import math
        rows_per_wave = nslow // 4
        ninstr = rows_per_wave // rpi
        a(f"v_lshrrev_b32 v3, {int(math.log2(cpr))}, v1")
        a(f"v_mul_u32_u24 v4, {rows_per_wave}, v2")
        a("v_add_u32 v3, v3, v4")
        a(f"v_and_b32 v4, {cpr-1}, v1")
        a(f"v_mul_u32_u24 v5, {RS}, v3")
        a("v_lshl_add_u32 v5, v4, 4, v5")
        a("v_mul_lo_u32 v3, v3, s21")
        a("v_lshl_add_u32 v3, v4, 4, v3")
        a(f"s_mul_i32 s26, s21, {rpi}")
        a("s_mov_b32 s25, s28")
        base = self.ACC
        for j in range(ninstr):
            a(f"ds_read_b128 {vr(base+(j%8)*4,4)}, v5 offset:{j*rpi*RS}")
            if j >= 7:
                a("s_waitcnt lgkmcnt(7)")
                jj = j - 7
                a(f"buffer_store_dwordx4 {vr(base+(jj%8)*4,4)}, v3, s[12:15], s25 offen")
                a("s_add_u32 s25, s25, s26")
        for jj in range(max(0, ninstr-7), ninstr):
            a(f"s_waitcnt lgkmcnt({ninstr-1-jj})")
            a(f"buffer_store_dwordx4 {vr(base+(jj%8)*4,4)}, v3, s[12:15], s25 offen")
            a("s_add_u32 s25, s25, s26")
        a("s_waitcnt vmcnt(0)")

    def epilogue(self):
        a = self.a; WM, WN = self.WM, self.WN
        if "A" in self.abl: return
        if self.mode == "N":
            es = 4 if self.epi == "f32" else 2
            a("v_and_b32 v3, 31, v1")
            a("v_lshrrev_b32 v4, 1, v2")
            a(f"v_mul_u32_u24 v4, {32*WM}, v4")
            a("v_add_u32 v3, v3, v4")
            a("v_mul_lo_u32 v3, v3, s21")
            a("v_and_b32 v4, 1, v2")
            a(f"v_mul_u32_u24 v4, {32*WN*es}, v4")
            a("v_add_u32 v3, v3, v4")
            a("v_lshrrev_b32 v4, 5, v1")
            a(f"v_lshl_add_u32 v3, v4, {4 if es==4 else 3}, v3")
            a("s_lshl_b32 s26, s21, 5")
            a("s_mov_b32 s25, s28")
            for m in range(WM):
                for n in range(WN):
                    b = self.ACC + (m*WN+n)*16
                    for g in range(4):
                        if self.epi == "f32":
                            a(f"buffer_store_dwordx4 {vr(b+g*4,4)}, v3, s[12:15], s25 offen offset:{(n*32+8*g)*4}")
                        else:
                            for r in range(4):
                                a(f"v_max_f32 v{b+g*4+r}, s24, v{b+g*4+r}")
                            a(f"v_cvt_pk_bf16_f32 v{b+g*4}, v{b+g*4}, v{b+g*4+1}")
                            a(f"v_cvt_pk_bf16_f32 v{b+g*4+1}, v{b+g*4+2}, v{b+g*4+3}")
                            a(f"buffer_store_dwordx2 {vr(b+g*4,2)}, v3, s[12:15], s25 offen offset:{(n*32+8*g)*2}")
                if m < WM - 1:
                    a("s_add_u32 s25, s25, s26")
        else:
            a("v_and_b32 v3, 31, v1")
            a("v_and_b32 v4, 1, v2")
            a(f"v_mul_u32_u24 v4, {32*WN}, v4")
            a("v_add_u32 v3, v3, v4")
            a("v_mul_lo_u32 v3, v3, s21")
            a("v_lshrrev_b32 v4, 1, v2")
            a(f"v_mul_u32_u24 v4, {32*WM*2}, v4")
            a("v_add_u32 v3, v3, v4")
            a("v_lshrrev_b32 v4, 5, v1")
            a("v_lshl_add_u32 v3, v4, 4, v3")
            a("s_lshl_b32 s26, s21, 5")
            a("s_mov_b32 s25, s28")
            for n in range(WN):
                for m in range(WM):
                    b = self.ACC + (m*WN+n)*16
                    for g in range(4):
                        a(f"v_cvt_pk_bf16_f32 v{b+g*4}, v{b+g*4}, v{b+g*4+1}")
                        a(f"v_cvt_pk_bf16_f32 v{b+g*4+1}, v{b+g*4+2}, v{b+g*4+3}")
                        off = (m*32 + (g>>1)*16 + (g&1)*4) * 2
                        a(f"buffer_store_dwordx2 {vr(b+g*4,2)}, v3, s[12:15], s25 offen offset:{off}")
                if n < WN - 1:
                    a("s_add_u32 s25, s25, s26")
        a("s_waitcnt vmcnt(0)")
```

```python
from asmlib import *
from gemm import Gemm
from k1 import WS_Q, WS_K, WS_VT, WS_H, WS_CTX, WS_PART

def proj_prologue(a, name, BM, BN, with_h, ntiles_out):
    MT = 2048 // BM
    NQ = 4096 // BN
    NH = 4608 // BN
    ntl = 3 * NQ + (NH if with_h else 0)
    ntl_pad = (ntl + 7) // 8 * 8
    ntiles_out.append(ntl_pad * MT)
    a(f"s_cmp_ge_u32 s2, {ntl_pad*MT}")
    a(f"s_cbranch_scc1 {name}_end")
    a("s_load_dwordx2 s[26:27], s[0:1], 0")
    a("s_load_dwordx2 s[28:29], s[0:1], 8")
    a("s_load_dwordx2 s[32:33], s[0:1], 96")
    import math
    a("s_and_b32 s34, s2, 7")
    a("s_lshr_b32 s35, s2, 3")
    a(f"s_lshr_b32 s37, s35, {int(math.log2(MT))}")
    a(f"s_and_b32 s35, s35, {MT-1}")
    a("s_lshl_b32 s37, s37, 3")
    a("s_add_u32 s34, s34, s37")
    a(f"s_cmp_ge_u32 s34, {ntl}")
    a(f"s_cbranch_scc1 {name}_end")
    a(f"s_lshr_b32 s36, s34, {int(math.log2(NQ))}")
    a(f"s_cmp_ge_u32 s34, {3*NQ}")
    a("s_cselect_b32 s36, 3, s36")
    a("s_lshl_b32 s37, s36, 3")
    a("s_add_u32 s37, s37, 16")
    a("s_cmp_eq_u32 s36, 3")
    a("s_cselect_b32 s37, 56, s37")
    a("s_load_dwordx2 s[30:31], s[0:1], s37")
    a(f"s_mul_i32 s38, s36, {NQ}")
    a("s_sub_u32 s38, s34, s38")
    a("s_cmp_eq_u32 s36, 0")
    a("s_cselect_b32 s39, 1, 0")
    a("s_cmp_eq_u32 s36, 3")
    a("s_cselect_b32 s39, 1, s39")
    a("s_waitcnt lgkmcnt(0)")
    a("s_cmp_eq_u32 s39, 1")
    a("s_cselect_b32 s4, s26, s28")
    a("s_cselect_b32 s5, s27, s29")
    a("s_mov_b32 s41, 2097152")
    a("s_cselect_b32 s6, 2359296, s41")
    a("s_mov_b32 s7, 0x00020000")
    a("s_mov_b32 s41, 1024")
    a("s_cselect_b32 s19, 1152, s41")
    a("s_cselect_b32 s18, 9, 8")
    a("s_mov_b32 s8, s30")
    a("s_mov_b32 s9, s31")
    a("s_cmp_eq_u32 s36, 3")
    a("s_mov_b32 s41, 8192")
    a("s_cselect_b32 s20, 9216, s41")
    a("s_mul_i32 s10, s18, 64")
    a("s_mul_i32 s10, s10, s20")
    a("s_mov_b32 s11, 0x00020000")
    a("s_lshl_b32 s23, s20, 6")
    a("s_mov_b32 s40, 0")
    a("s_cmp_eq_u32 s36, 1")
    a(f"s_cselect_b32 s40, {WS_K}, s40")
    a("s_cmp_eq_u32 s36, 2")
    a(f"s_cselect_b32 s40, {WS_VT}, s40")
    a("s_cmp_eq_u32 s36, 3")
    a(f"s_cselect_b32 s40, {WS_H}, s40")
    a("s_add_u32 s12, s32, s40")
    a("s_addc_u32 s13, s33, 0")
    a("s_cmp_eq_u32 s36, 3")
    a("s_mov_b32 s41, 16777216")
    a("s_cselect_b32 s14, 18874368, s41")
    a("s_mov_b32 s15, 0x00020000")
    a("s_mov_b32 s21, s20")
    a("s_cselect_b32 s24, 0, 0xff800000")
    a(f"s_mul_i32 s16, s35, {BM}")
    a("s_mul_i32 s16, s16, s19")
    a(f"s_mul_i32 s17, s38, {BN*2}")
    a(f"s_mul_i32 s28, s35, {BM}")
    a("s_mul_i32 s28, s28, s21")
    a("s_add_u32 s28, s28, s17")
    a("s_cmp_eq_u32 s36, 2")
    a(f"s_cbranch_scc0 {name}_notT")
    a("s_movk_i32 s21, 4096")
    a(f"s_mul_i32 s28, s38, {BN*4096}")
    a(f"s_mul_i32 s25, s35, {BM*2}")
    a("s_add_u32 s28, s28, s25")
    a.label(f"{name}_notT")

def gen_k1(a, name="k1_kernel", WM=4, WN=2, NST=3, with_h=False):
    kernel_header(a, name)
    nt = []
    proj_prologue(a, name, 64*WM, 64*WN, with_h, nt)
    gN = Gemm(a, name + "_N", WM, WN, NST, "N")
    gN.setup()
    a("s_cmp_eq_u32 s36, 2")
    a(f"s_cbranch_scc1 {name}_T")
    gN.mainloop(); gN.epilogue_lds()
    a(f"s_branch {name}_end")
    a.label(f"{name}_T")
    gT = Gemm(a, name + "_T", WM, WN, NST, "T")
    gT.mainloop(); gT.epilogue_lds()
    a.label(f"{name}_end")
    a("s_endpgm")
    kernel_desc(a, name, gN.NV)
    return nt[0], gN.lds

def gen_k3(a, name="k3_kernel", WM=2, NST=3, NSPLIT=5):
    kernel_header(a, name)
    WN = 3
    BM = 64 * WM; MT = 2048 // BM
    ntile = MT * 3
    a(f"s_cmp_ge_u32 s2, {ntile*NSPLIT}")
    a(f"s_cbranch_scc1 {name}_end")
    a("s_load_dwordx2 s[32:33], s[0:1], 96")
    a("s_load_dwordx2 s[26:27], s[0:1], 40")
    a("s_load_dwordx2 s[28:29], s[0:1], 64")
    magic = (65536 + ntile - 1) // ntile
    assert MT == 16
    a("s_and_b32 s35, s2, 7")
    a("s_lshr_b32 s36, s2, 3")
    a("s_and_b32 s37, s36, 1")
    a("s_lshl_b32 s37, s37, 3")
    a("s_add_u32 s35, s35, s37")
    a("s_lshr_b32 s36, s36, 1")
    a("s_mul_i32 s34, s36, 21846")
    a("s_lshr_b32 s34, s34, 16")
    a("s_mul_i32 s37, s34, 3")
    a("s_sub_u32 s36, s36, s37")
    a("s_waitcnt lgkmcnt(0)")
    na, nb = {5: (2, 3), 4: (2, 2), 8: (4, 4), 6: (2, 4)}[NSPLIT]
    a(f"s_cmp_lt_u32 s34, {na}")
    a(f"s_mov_b32 s41, {WS_H}")
    a(f"s_cselect_b32 s40, {WS_CTX}, s41")
    a("s_add_u32 s4, s32, s40")
    a("s_addc_u32 s5, s33, 0")
    a(f"s_cmp_lt_u32 s34, {na}")
    a("s_mov_b32 s41, 18874368")
    a("s_cselect_b32 s6, 16777216, s41")
    a("s_mov_b32 s7, 0x00020000")
    a("s_mov_b32 s41, 9216")
    a("s_cselect_b32 s19, 8192, s41")
    a("s_cselect_b32 s8, s26, s28")
    a("s_cselect_b32 s9, s27, s29")
    a("s_mov_b32 s41, 5308416")
    a("s_cselect_b32 s10, 4718592, s41")
    a("s_mov_b32 s11, 0x00020000")
    a(f"s_cselect_b32 s18, {64//na}, {72//nb}")
    a(f"s_sub_u32 s41, s34, {na}")
    a("s_cselect_b32 s41, s34, s41")
    a("s_mul_i32 s41, s41, s18")
    a("s_mov_b32 s20, 1152")
    a("s_mov_b32 s23, 73728")
    a(f"s_mul_i32 s16, s35, {BM}")
    a("s_mul_i32 s16, s16, s19")
    a("s_lshl_b32 s25, s41, 7")
    a("s_add_u32 s16, s16, s25")
    a("s_mul_i32 s17, s41, s23")
    a("s_mul_i32 s25, s36, 384")
    a("s_add_u32 s17, s17, s25")
    a("s_mul_i32 s25, s34, 4718592")
    a(f"s_add_u32 s25, s25, {WS_PART}")
    a("s_add_u32 s12, s32, s25")
    a("s_addc_u32 s13, s33, 0")
    a("s_mov_b32 s14, 4718592")
    a("s_mov_b32 s15, 0x00020000")
    a("s_movk_i32 s21, 2304")
    a(f"s_mul_i32 s28, s35, {BM*2304}")
    a("s_mul_i32 s25, s36, 768")
    a("s_add_u32 s28, s28, s25")
    g = Gemm(a, name, WM, WN, NST, "N", "f32")
    g.setup(); g.mainloop(); g.epilogue()
    a.label(f"{name}_end")
    a("s_endpgm")
    kernel_desc(a, name, g.NV)
    return ntile * NSPLIT, g.lds
```

```python
import sys
from asmlib import *
import kernels
from k2 import gen_k2
from k3 import gen_k4
a = Asm()
hdr = open("gated_mix__compressed_kv_cla__dense_activation_relu__prompt.s.ref").read().split("\n")
for l in hdr:
    if l.startswith("; @launch") or not l.startswith(";"):
        break
    a.raw(l)
body = Asm()
n1, l1 = kernels.gen_k1(body, "k1_kernel", 2, 2, 2, True)
gen_k2(body)
n3, l3 = kernels.gen_k3(body, "k3_kernel", 2, 2, 5)
gen_k4(body)
a.raw(f"; @launch kernel=k1_kernel grid=({n1},1,1) block=(256,1,1) lds={l1}")
a.raw("; @launch kernel=k2_kernel grid=(512,1,1) block=(256,1,1) lds=65536")
a.raw(f"; @launch kernel=k3_kernel grid=({n3},1,1) block=(256,1,1) lds={l3}")
a.raw("; @launch kernel=k4_kernel grid=(512,1,1) block=(256,1,1) lds=0")
a.raw('.amdgcn_target "amdgcn-amd-amdhsa--gfx950"')
a.raw(".text")
a.lines += body.lines
open(sys.argv[1], "w").write(a.text())
```
